```python
import torch

def _softmax(x, axis=-1):
    return torch.softmax(x, dim=axis)
def _gelu(x):
    return torch.nn.functional.gelu(x, approximate="tanh")
def _silu(x):
    return torch.nn.functional.silu(x)
def _sigmoid(x):
    return torch.sigmoid(x)
def _layernorm(x, axis=-1, eps=1e-5):
    m = x.mean(dim=axis, keepdim=True)
    v = x.var(dim=axis, keepdim=True, unbiased=False)
    return (x - m) / torch.sqrt(v + eps)
def _scatter_add(tgt, idx, src, axis=0):
    return tgt.clone().index_add_(axis, idx, src)
def _segment_sum(src, seg, n):
    out = torch.zeros((n,) + src.shape[1:], dtype=src.dtype)
    return out.index_add_(0, seg, src)
def _pad(x, pw):
    flat = tuple(v for pair in reversed(pw) for v in pair)
    return torch.nn.functional.pad(x, flat)

kernel_name = 'standalone__mha_block_cached__near_ridge'

def setup_inputs():

    _w = (lambda a: (lambda t: t.to(torch.bfloat16) if t.is_floating_point() else t)(torch.as_tensor(a)))
    B, Sq, D = 32, 64, 576
    H, Sk, Dh = 32, 512, 128
    return {
        "x": _w((lambda *s: torch.randn(*s, dtype=torch.bfloat16) * 0.8)(B, Sq, D)),
        "k_cache": _w((lambda *s: torch.randn(*s, dtype=torch.bfloat16) * 0.8)(B, H, Sk, Dh)),
        "v_cache": _w((lambda *s: torch.randn(*s, dtype=torch.bfloat16) * 0.05)(B, H, Sk, Dh)),
        "wq": _w((lambda *s: torch.randn(*s, dtype=torch.bfloat16) * 0.8)(D, H * Dh) * (D ** -0.5)),
        "wo": _w((lambda *s: torch.randn(*s, dtype=torch.bfloat16) * 0.05)(H * Dh, D) * ((H * Dh) ** -0.5)),
    }

def reference(x, k_cache, v_cache, wq, wo):
    B, Sq, D = x.shape
    H, Dh = 32, 128
    q = (lambda x, *d: x.permute(*d))((x @ wq).reshape(B, Sq, H, Dh), 0, 2, 1, 3)
    scores = torch.einsum("bhqd,bhkd->bhqk", q, k_cache) * (Dh ** -0.5)
    p = _softmax(scores, axis=-1)
    o = torch.einsum("bhqk,bhkd->bhqd", p, v_cache)
    return (lambda x, *d: x.permute(*d))(o, 0, 2, 1, 3).reshape(B, Sq, H * Dh) @ wo
```

```python
import re

class Asm:
    def __init__(self):
        self.L = []
    def __call__(self, s):
        self.L.append(s)
    def c(self, s):
        self.L.append("; " + s)
    def label(self, s):
        self.L.append(s + ":")
    def nop(self, n):
        while n > 0:
            k = min(n, 16)
            self.L.append(f"s_nop {k-1}")
            n -= k
    def text(self):
        return "\n".join(self.L) + "\n"

def vr(base, n=1, kind="v"):
    if n == 1: return f"{kind}{base}"
    return f"{kind}[{base}:{base+n-1}]"

REG_RE = re.compile(r"^(-|\|)?(v|a|s)(\d+)$|^(-)?(v|a|s)\[(\d+):(\d+)\]$")
def regs_of(tok):
    tok = tok.strip()
    tok = tok.replace("abs(", "").replace(")", "").replace("|", "")
    if tok.startswith("-"): tok = tok[1:]
    m = re.match(r"^(v|a|s)(\d+)$", tok)
    if m: return [(m.group(1), int(m.group(2)))]
    m = re.match(r"^(v|a|s)\[(\d+):(\d+)\]$", tok)
    if m: return [(m.group(1), i) for i in range(int(m.group(2)), int(m.group(3)) + 1)]
    if tok in ("vcc", "exec", "m0"): return [("x", tok)]
    return []

TRANS = ("v_exp_f32", "v_log_f32", "v_rcp_f32", "v_rsq_f32", "v_sqrt_f32", "v_sin_f32", "v_cos_f32")

def parse(line):
    s = line.split(";")[0].strip()
    if not s or s.endswith(":") or s.startswith("."): return None
    parts = s.split(None, 1)
    mn = parts[0]
    ops = []
    if len(parts) > 1:
        rest = parts[1]
        toks = [t.strip() for t in rest.split(",")]
        for t in toks:
            ops.append(t.split()[0] if t else t)
    return mn, ops, s

def classify(mn, ops):
    d = dict(kind="other", w=[], r=[], passes=0, C=[], AB=[])
    R = regs_of
    if mn.startswith("v_mfma"):
        d["kind"] = "mfma"
        d["w"] = R(ops[0]); d["AB"] = R(ops[1]) + R(ops[2]); d["C"] = R(ops[3]); d["r"] = d["AB"] + d["C"]
        d["passes"] = 8 if "32x32" in mn else 4
    elif mn.startswith("v_cmp"):
        d["kind"] = "valu"; d["w"] = R(ops[0]); d["r"] = sum((R(o) for o in ops[1:]), [])
    elif mn in ("v_readfirstlane_b32", "v_readlane_b32"):
        d["kind"] = "valu"; d["rfl"] = True; d["w"] = R(ops[0]); d["r"] = sum((R(o) for o in ops[1:]), [])
    elif mn.startswith("v_permlane") and "swap" in mn:
        d["kind"] = "valu"; d["perm"] = True; d["w"] = R(ops[0]) + R(ops[1]); d["r"] = R(ops[0]) + R(ops[1])
    elif mn.startswith("v_"):
        d["kind"] = "valu"; d["w"] = R(ops[0]); d["r"] = sum((R(o) for o in ops[1:]), [])
        if mn.startswith(("v_fmac", "v_pk_fmac")): d["r"] += R(ops[0])
        if mn.startswith("v_cndmask") and len(ops) == 3: d["r"].append(("x", "vcc"))
        if "_co_" in mn: d["w"] += R(ops[1])
        base = mn.replace("_e32", "").replace("_e64", "")
        if base in TRANS: d["trans"] = True
        if "dpp" in mn: d["dpp"] = True
    elif mn.startswith("ds_read"):
        d["kind"] = "ds"; d["w"] = R(ops[0]); d["r"] = R(ops[1])
    elif mn.startswith("ds_write"):
        d["kind"] = "ds"; d["r"] = sum((R(o) for o in ops), [])
    elif mn.startswith(("buffer_load", "global_load")):
        d["kind"] = "vmem"
        if "lds" in mn or len(ops) == 3 and mn.startswith("buffer"):
            d["r"] = sum((R(o) for o in ops), []) + [("x", "m0")]; d["lds"] = True
        else:
            d["w"] = R(ops[0]); d["r"] = sum((R(o) for o in ops[1:]), [])
    elif mn.startswith(("buffer_store", "global_store", "buffer_atomic", "global_atomic")):
        d["kind"] = "vmem"; d["r"] = sum((R(o) for o in ops), [])
        if "x4" in mn or "x3" in mn:
            d["wide_store"] = R(ops[0]) if mn.startswith("buffer") else R(ops[1])
    elif mn.startswith("s_"):
        d["kind"] = "salu"
        if mn.startswith(("s_cmp", "s_cbranch", "s_branch", "s_waitcnt", "s_barrier", "s_nop", "s_endpgm", "s_setprio", "s_sleep", "s_bitcmp")):
            d["r"] = sum((R(o) for o in ops), [])
        else:
            d["w"] = R(ops[0]) if ops else []; d["r"] = sum((R(o) for o in ops[1:]), [])
    return d

def check_hazards(text, verbose=True):
    ins = []
    for ln, line in enumerate(text.splitlines(), 1):
        p = parse(line)
        if p is None:
            continue
        mn, ops, s = p
        d = classify(mn, ops); d["mn"] = mn; d["line"] = ln; d["s"] = s
        d["states"] = 1
        if mn == "s_nop": d["states"] = int(ops[0], 0) + 1
        ins.append(d)
    probs = []
    n = len(ins)
    for i, a in enumerate(ins):
        dist = 0
        for j in range(i + 1, n):
            b = ins[j]
            if dist >= 20: break
            if a["mn"] in ("s_branch", "s_endpgm"): break
            need = 0; why = ""
            aw = set(a["w"])
            if a["kind"] == "valu":
                vw = {x for x in aw if x[0] in "va"}
                sw = {x for x in aw if x[0] in "sx"}
                if b["kind"] == "mfma" and vw & set(b["r"]): need, why = 2, "VALU->MFMA"
                if b["kind"] == "valu" and b.get("perm") and vw & set(b["r"]): need, why = max(need, 2), "VALU->permlane"
                if b["kind"] == "valu" and b.get("rfl") and vw & set(b["r"]): need, why = max(need, 1), "VALU->readlane"
                if b["kind"] == "valu" and b.get("dpp") and vw & set(b["r"]): need, why = max(need, 2), "VALU->DPP"
                if a.get("trans") and b["kind"] in ("valu", "mfma") and not b.get("trans") and vw & set(b["r"]): need, why = max(need, 1), "trans->use"
                if sw and b["kind"] == "vmem" and sw & set(b["r"]): need, why = max(need, 5), "VALU sgpr->VMEM"
                if sw and b["kind"] == "valu" and sw & set(b["r"]): need, why = max(need, 2), "VALU sgpr->VALU"
                if sw and b["kind"] == "salu" and sw & set(b["r"]): need, why = max(need, 4), "VALU sgpr->SALU(pad)"
            if a["kind"] == "mfma":
                P = a["passes"]
                big = {4: 8, 8: 12}[P]; ovl = {4: 6, 8: 10}[P]; war = {4: 3, 8: 7}[P]
                if b["kind"] == "mfma":
                    if aw & set(b["AB"]): need, why = big, "MFMA D->MFMA A/B"
                    elif aw & set(b["C"]):
                        if set(b["C"]) == aw and b["passes"] == P: pass
                        else: need, why = ovl, "MFMA D->MFMA C overlap"
                    elif aw & set(b["w"]):
                        need, why = ovl, "MFMA D->MFMA D WAW(nonchain)"
                elif b["kind"] in ("valu", "ds", "vmem"):
                    if aw & (set(b["r"]) | set(b["w"])): need, why = big, "MFMA D->VALU/mem"
                    if b["kind"] == "valu" and set(a["C"]) & set(b["w"]): need, why = max(need, war), "MFMA C WAR"
            if a["kind"] == "vmem" and a.get("wide_store"):
                if b["kind"] == "valu" and set(a["wide_store"]) & set(b["w"]): need, why = 2, "store data WAR"
                elif b["kind"] in ("ds", "vmem", "mfma") and set(a["wide_store"]) & set(b["w"]): need, why = 1, "store data WAR"
            if a["kind"] == "salu" and ("x", "m0") in aw and b.get("lds"): need, why = 1, "m0->ldsdma"
            if need > dist:
                probs.append(f"{why}: need {need} have {dist}: L{a['line']} `{a['s']}` -> L{b['line']} `{b['s']}`")
            dist += b["states"]
    return probs
```

```python
import sys
from asmlib import Asm, vr, check_hazards

KNAME = "standalone__mha_block_cached__near_ridge_kernel"
HDR = """; Kernarg layout for this problem (64 bytes, ptrs only, base s[0:1]):
"""

def srd(e, d, s, n):
    e(f"s_mov_b32 s{d}, s{s}"); e(f"s_and_b32 s{d+1}, s{s+1}, 0xffff")
    e(f"s_mov_b32 s{d+2}, {n}"); e(f"s_mov_b32 s{d+3}, 0x20000")

def kdesc(e, name, vgpr, sgpr, acc):
    e('.section .rodata,"a"'); e(".p2align 6")
    e(f".amdhsa_kernel {name}")
    e(f"  .amdhsa_next_free_vgpr {vgpr}"); e(f"  .amdhsa_next_free_sgpr {sgpr}"); e(f"  .amdhsa_accum_offset {acc}")
    e("  .amdhsa_group_segment_fixed_size 0"); e("  .amdhsa_kernarg_size 64"); e("  .amdhsa_user_sgpr_count 2")
    e("  .amdhsa_user_sgpr_kernarg_segment_ptr 1"); e("  .amdhsa_system_sgpr_workgroup_id_x 1")
    e(".end_amdhsa_kernel")
    e(".text")

class Stream:
    def __init__(self, e, fbase, nbuf, D):
        self.e, self.fbase, self.nbuf, self.D = e, fbase, nbuf, D
        self.cnt = 0
    def run(self, jobs):
        e = self.e
        n = len(jobs)
        issued = 0
        nreads = []
        tot = 0
        for k in range(n):
            while issued < min(k + self.D + 1, n):
                j = jobs[issued]
                if j.get("pre"): j["pre"]()
                fb = self.fbase + 4 * ((self.cnt + issued) % self.nbuf)
                j["fb"] = fb
                for ln in j.get("xreads", []):
                    e(ln); tot += 1
                for (sub, cnt, fmt) in j["reads"]:
                    e(fmt.format(d=vr(fb + sub, cnt))); tot += 1
                nreads.append(tot)
                issued += 1
            out = tot - nreads[k]
            assert out <= 15
            e(f"s_waitcnt lgkmcnt({out})")
            for ln in jobs[k]["mfma"](jobs[k]["fb"]): e(ln)
        self.cnt += n

def gen_attn(e, NS=10, nt=True, early_barrier=True):
    SLOT = 16384
    ntf = " nt" if nt else ""
    e(f".globl {KNAME}"); e(".p2align 8"); e(f".type {KNAME},@function"); e(f"{KNAME}:")
    e("s_cmp_ge_u32 s2, 256"); e("s_cbranch_scc1 A_end")
    e("s_load_dwordx4 s[4:7], s[0:1], 0")
    e("s_load_dwordx4 s[8:11], s[0:1], 16")
    e("s_load_dwordx2 s[12:13], s[0:1], 56")
    e("v_lshrrev_b32 v1, 6, v0")
    e("v_and_b32 v2, 63, v0")
    e("v_readfirstlane_b32 s3, v1")
    e("s_and_b32 s37, s2, 7")
    e("s_lshr_b32 s36, s2, 3")
    e("s_waitcnt lgkmcnt(0)")
    srd(e, 16, 4, 32*64*576*2); srd(e, 20, 6, 134217728); srd(e, 24, 8, 134217728); srd(e, 28, 10, 576*4096*2); srd(e, 32, 12, 32*32*16384)
    e("s_cmp_ge_u32 s3, 4"); e("s_cbranch_scc1 A_loader")
    S, F, AD, LBW, LBK, LBV, T0 = 0, 128, 152, 160, 161, 162, 163
    L15, G = 164, 165
    e.c("---- compute wave prologue")
    e(f"v_and_b32 v{L15}, 15, v2")
    e(f"v_lshrrev_b32 v{G}, 4, v2")
    e("s_lshl_b32 s38, s36, 6"); e("s_lshl_b32 s39, s3, 4"); e("s_add_u32 s38, s38, s39")
    e(f"v_add_u32 v{T0}, s38, v{L15}")
    e(f"v_mul_u32_u24 v{T0}, 1152, v{T0}")
    e(f"v_lshlrev_b32 v3, 4, v{G}")
    e(f"v_add_u32 v{T0}, v{T0}, v3")
    for ks in range(18):
        e(f"buffer_load_dwordx4 a[{4*ks}:{4*ks+3}], v{T0}, s[16:19], 0 offen offset:{ks*64}")
    e("v_bfe_u32 v3, v2, 2, 2"); e("v_and_b32 v4, 3, v2")
    e(f"v_lshlrev_b32 v5, 3, v{G}"); e("v_add_u32 v5, v5, v3"); e("v_lshlrev_b32 v5, 8, v5")
    e("v_lshrrev_b32 v6, 1, v3"); e(f"v_and_b32 v7, 1, v{G}"); e("v_lshlrev_b32 v7, 1, v7"); e("v_add_u32 v6, v6, v7"); e("v_lshlrev_b32 v6, 2, v6")
    e("v_and_b32 v7, 1, v3"); e("v_xor_b32 v7, v7, v4"); e("v_add_u32 v6, v6, v7"); e("v_lshlrev_b32 v6, 4, v6")
    e("v_and_b32 v7, 1, v4"); e("v_lshlrev_b32 v7, 3, v7")
    e("v_add_u32 v5, v5, v6"); e(f"v_add_u32 v{LBW}, v5, v7")
    e(f"v_lshlrev_b32 v5, 8, v{L15}"); e(f"v_xor_b32 v6, v{G}, v{L15}"); e("v_lshlrev_b32 v6, 4, v6"); e(f"v_add_u32 v{LBK}, v5, v6")
    e(f"v_lshlrev_b32 v5, 2, v{G}"); e("v_add_u32 v5, v5, v3"); e("v_lshlrev_b32 v5, 8, v5")
    e(f"v_and_b32 v6, 1, v{G}"); e("v_lshlrev_b32 v6, 3, v6"); e("v_lshlrev_b32 v8, 1, v3"); e("v_add_u32 v6, v6, v8")
    e("v_lshrrev_b32 v8, 1, v4"); e("v_xor_b32 v6, v6, v8"); e("v_lshlrev_b32 v6, 4, v6")
    e("v_add_u32 v5, v5, v6"); e(f"v_add_u32 v{LBV}, v5, v7")
    e(f"v_lshlrev_b32 v{T0+3}, 4, v2")
    OST = T0 + 3
    e("s_lshl_b32 s42, s36, 5"); e("s_lshl_b32 s43, s37, 2"); e("s_add_u32 s42, s42, s43")
    e("s_lshl_b32 s42, s42, 2"); e("s_add_u32 s42, s42, s3"); e("s_lshl_b32 s42, s42, 12")
    e("s_mov_b32 s40, 0xffff0000"); e("s_mov_b32 s41, 0xffff0000")
    e("s_mov_b32 s44, 0x3e0293ee")
    e("s_mov_b32 s45, s44")
    e("s_mov_b32 s46, 0")
    e("s_mov_b32 s47, 0")
    e("s_waitcnt vmcnt(0)")
    st = Stream(e, F, 6, 5)

    def next_slot(lb, xors):
        def f():
            e("s_barrier")
            e(f"v_add_u32 v{AD}, s46, v{lb}")
            for k, x in enumerate(xors):
                if k == 0: continue
                e(f"v_xor_b32 v{AD+k}, {x}, v{AD}")
            e(f"s_add_u32 s46, s46, {SLOT}"); e(f"s_cmp_eq_u32 s46, {NS*SLOT}"); e("s_cselect_b32 s46, 0, s46")
        return f

    e.label("A_unit")
    e.c("---- Q projection")
    jobs = []
    xw = [((d >> 1) << 6) | ((d & 1) << 3) for d in range(8)]
    for s in range(9):
        for ksl in range(2):
            ks = 2 * s + ksl
            for dt in range(8):
                j = dict(reads=[(0, 2, f"ds_read_b64_tr_b16 {{d}}, v{AD+dt} offset:{ksl*8192}"),
                                (2, 2, f"ds_read_b64_tr_b16 {{d}}, v{AD+dt} offset:{ksl*8192+1024}")])
                if ksl == 0 and dt == 0: j["pre"] = next_slot(LBW, xw)
                acc = vr(S + 4 * dt, 4)
                c = "0" if ks == 0 else acc
                j["mfma"] = (lambda fb, acc=acc, c=c, ks=ks: [f"v_mfma_f32_16x16x32_bf16 {acc}, {vr(fb,4)}, a[{4*ks}:{4*ks+3}], {c}"])
                jobs.append(j)
    st.run(jobs)
    e.c("---- Q convert")
    e.nop(8)
    for t in range(4):
        a, b_ = S + 8 * t, S + 8 * t + 4
        p = F + 4 * (t % 2) * 2
        P0 = F + 8 * (t % 2); R0 = P0 + 4
        e(f"v_cvt_pk_bf16_f32 v{P0}, v{a}, v{a+1}"); e(f"v_cvt_pk_bf16_f32 v{P0+1}, v{a+2}, v{a+3}")
        e(f"v_cvt_pk_bf16_f32 v{P0+2}, v{b_}, v{b_+1}"); e(f"v_cvt_pk_bf16_f32 v{P0+3}, v{b_+2}, v{b_+3}")
        e(f"v_cndmask_b32 v{R0}, v{P0}, v{P0+2}, s[40:41]"); e(f"v_cndmask_b32 v{R0+1}, v{P0+1}, v{P0+3}, s[40:41]")
        e(f"v_cndmask_b32 v{R0+2}, v{P0+2}, v{P0}, s[40:41]"); e(f"v_cndmask_b32 v{R0+3}, v{P0+3}, v{P0+1}, s[40:41]")
        for i in range(4): e(f"v_accvgpr_write_b32 a{72+4*t+i}, v{R0+i}")
    e.c("---- QK^T")
    jobs = []
    xk = [t << 6 for t in range(4)]
    for s in range(8):
        for kt in range(4):
            T = 4 * s + kt
            for t in range(4):
                j = dict(reads=[(0, 4, f"ds_read_b128 {{d}}, v{AD+t} offset:{kt*4096}")])
                if kt == 0 and t == 0: j["pre"] = next_slot(LBK, xk)
                acc = vr(S + 4 * T, 4)
                c = "0" if t == 0 else acc
                j["mfma"] = (lambda fb, acc=acc, c=c, t=t: [f"v_mfma_f32_16x16x32_bf16 {acc}, {vr(fb,4)}, a[{72+4*t}:{75+4*t}], {c}"])
                jobs.append(j)
    st.run(jobs)
    e.c("---- softmax")
    M = F
    e(f"v_max3_f32 v{M}, v0, v1, v2"); e(f"v_max3_f32 v{M+1}, v3, v4, v5"); e(f"v_max3_f32 v{M+2}, v6, v7, v8"); e(f"v_max3_f32 v{M+3}, v9, v10, v11")
    i = 12; c = 0
    while i < 128:
        e(f"v_max3_f32 v{M+c}, v{M+c}, v{i}, v{i+1}"); i += 2; c = (c + 1) % 4
    e(f"v_max3_f32 v{M}, v{M}, v{M+1}, v{M+2}"); e(f"v_max_f32 v{M}, v{M}, v{M+3}")
    e(f"v_mov_b32 v{M+1}, v{M}"); e.nop(2)
    e(f"v_permlane32_swap_b32 v{M}, v{M+1}"); e.nop(1)
    e(f"v_max_f32 v{M}, v{M}, v{M+1}")
    e(f"v_mov_b32 v{M+1}, v{M}"); e.nop(2)
    e(f"v_permlane16_swap_b32 v{M}, v{M+1}"); e.nop(1)
    e(f"v_max_f32 v{M}, v{M}, v{M+1}")
    e(f"v_mul_f32 v{M+2}, s44, v{M}"); e(f"v_mul_f32 v{M+3}, s44, v{M}")
    e(f"v_mov_b32 v{M+4}, 0x3f803f80")
    for i in range(4): e(f"v_accvgpr_write_b32 a{72+i}, v{M+4}")
    for g8 in range(16):
        b0 = 8 * g8
        for i in range(0, 8, 2):
            e(f"v_pk_fma_f32 v[{b0+i}:{b0+i+1}], v[{b0+i}:{b0+i+1}], s[44:45], v[{M+2}:{M+3}] neg_lo:[0,0,1] neg_hi:[0,0,1]")
        for i in range(8): e(f"v_exp_f32 v{b0+i}, v{b0+i}")
        for i in range(4): e(f"v_cvt_pk_bf16_f32 v{4*g8+i}, v{b0+2*i}, v{b0+2*i+1}")
    e.c("---- PV")
    jobs = []
    xv = [d << 5 for d in range(8)]
    O, LS = 64, 96
    for s in range(8):
        for ksl in range(2):
            ks = 2 * s + ksl
            for dt in range(8):
                j = dict(reads=[(0, 2, f"ds_read_b64_tr_b16 {{d}}, v{AD+dt} offset:{ksl*8192}"),
                                (2, 2, f"ds_read_b64_tr_b16 {{d}}, v{AD+dt} offset:{ksl*8192+4096}")])
                if ksl == 0 and dt == 0: j["pre"] = next_slot(LBV, xv)
                acc = vr(O + 4 * dt, 4)
                c = "0" if ks == 0 else acc
                def mf(fb, acc=acc, c=c, ks=ks, dt=dt):
                    r = [f"v_mfma_f32_16x16x32_bf16 {acc}, {vr(fb,4)}, {vr(4*ks,4)}, {c}"]
                    if dt == 3:
                        lc = "0" if ks == 0 else vr(LS, 4)
                        r.append(f"v_mfma_f32_16x16x32_bf16 {vr(LS,4)}, a[72:75], {vr(4*ks,4)}, {lc}")
                    return r
                j["mfma"] = mf
                jobs.append(j)
    st.run(jobs)
    e.c("---- normalise + store o")
    e.nop(8)
    e(f"v_rcp_f32 v{F}, v{LS}"); e.nop(1)
    for i in range(32): e(f"v_mul_f32 v{O+i}, v{O+i}, v{F}")
    for t in range(4):
        a = O + 8 * t
        d = F + 4 + 4 * t
        for i in range(4): e(f"v_cvt_pk_bf16_f32 v{d+i}, v{a+2*i}, v{a+2*i+1}")
        e(f"buffer_store_dwordx4 v[{d}:{d+3}], v{OST}, s[32:35], s42 offen offset:{t*1024}")
    e(f"s_add_u32 s42, s42, {4*4096}")
    e("s_add_u32 s47, s47, 1"); e("s_cmp_lt_u32 s47, 4"); e("s_cbranch_scc1 A_unit")
    e("s_endpgm")
    e.label("A_loader")
    e("s_sub_u32 s3, s3, 4")
    e("v_lshrrev_b32 v3, 4, v2"); e("v_and_b32 v4, 15, v2")
    e("s_lshl_b32 s38, s3, 4")
    e("v_add_u32 v5, s38, v3")
    VK, VV, VW = 8, 12, 16
    for i in range(4):
        e(f"v_add_u32 v6, {4*i}, v3"); e("v_xor_b32 v7, v6, v4"); e("v_lshlrev_b32 v7, 4, v7"); e("v_lshlrev_b32 v20, 8, v5"); e(f"v_add_u32 v{VK+i}, v20, v7")
        e("v_and_b32 v7, 7, v6"); e("v_lshlrev_b32 v7, 1, v7"); e("v_xor_b32 v7, v7, v4"); e("v_lshlrev_b32 v7, 4, v7"); e(f"v_add_u32 v{VV+i}, v20, v7")
        e(f"v_add_u32 v21, {4*i}, v5")
        e("v_bfe_u32 v7, v21, 1, 1"); e("v_lshlrev_b32 v7, 2, v7"); e("v_bfe_u32 v22, v21, 3, 1"); e("v_lshlrev_b32 v22, 3, v22"); e("v_add_u32 v7, v7, v22")
        e("v_and_b32 v22, 1, v21"); e("v_add_u32 v7, v7, v22"); e("v_xor_b32 v7, v7, v4"); e("v_lshlrev_b32 v7, 4, v7")
        e("v_lshlrev_b32 v22, 13, v21"); e("v_add_u32 v7, v7, v22"); e(f"v_subrev_u32 v{VW+i}, {1024*i}, v7")
    e("s_lshl_b32 s48, s3, 12")
    e("s_lshl_b32 s49, s36, 5"); e("s_lshl_b32 s50, s37, 2"); e("s_add_u32 s49, s49, s50"); e("s_lshl_b32 s49, s49, 17")
    e("s_lshl_b32 s50, s37, 10")
    e("s_mul_i32 s51, s36, 18"); e("s_lshl_b32 s52, s3, 3")
    e("v_lshrrev_b32 v6, 3, v2"); e("v_add_u32 v6, s52, v6"); e("v_min_u32 v6, 17, v6"); e("v_add_u32 v6, s51, v6"); e("v_lshlrev_b32 v6, 13, v6")
    e("v_and_b32 v7, 7, v2"); e("v_lshlrev_b32 v7, 7, v7"); e("v_add_u32 v6, v6, v7")
    e("buffer_load_dword v23, v6, s[28:31], s50 offen")
    def issue(n):
        u, i = divmod(n, 25)
        ring = n % NS
        e(f"s_add_u32 m0, s48, {ring*SLOT}")
        if i < 9:
            e(f"s_add_u32 s53, s50, {u*256 + i*64*8192}")
            for q in range(4): e(f"buffer_load_dwordx4 v{VW+q}, s[28:31], s53 offen offset:{q*1024} lds")
        elif i < 17:
            e(f"s_add_u32 s53, s49, {u*131072 + (i-9)*SLOT}")
            for q in range(4): e(f"buffer_load_dwordx4 v{VK+q}, s[20:23], s53 offen offset:{q*1024}{ntf} lds")
        else:
            e(f"s_add_u32 s53, s49, {u*131072 + (i-17)*SLOT}")
            for q in range(4): e(f"buffer_load_dwordx4 v{VV+q}, s[24:27], s53 offen offset:{q*1024}{ntf} lds")
    NTOT = 100
    for n in range(NS - 2): issue(n)
    issued = NS - 2
    for m in range(NTOT):
        out = issued - (m + 1)
        e(f"s_waitcnt vmcnt({4*out})")
        e("s_barrier")
        if issued < NTOT:
            issue(issued); issued += 1
    e.label("A_end")
    e("s_endpgm")
    kdesc(e, KNAME, 256, 64, 168)

def gen_oproj(e, mapping=0):
    NAME = "oproj_kernel"
    WOB, OB = 18432, 16384
    SLOT = WOB + OB
    NS = 4
    e(f".globl {NAME}"); e(".p2align 8"); e(f".type {NAME},@function"); e(f"{NAME}:")
    e("s_cmp_ge_u32 s2, 256"); e("s_cbranch_scc1 B_end")
    e("s_load_dwordx4 s[4:7], s[0:1], 32")
    e("s_load_dwordx2 s[12:13], s[0:1], 56")
    e("v_lshrrev_b32 v1, 6, v0")
    e("v_and_b32 v2, 63, v0")
    e("v_readfirstlane_b32 s3, v1")
    if mapping == 0:
        e("s_and_b32 s37, s2, 7"); e("s_lshr_b32 s36, s2, 3")
    else:
        e("s_and_b32 s36, s2, 7"); e("s_lshl_b32 s36, s36, 2"); e("s_lshr_b32 s37, s2, 3"); e("s_and_b32 s38, s37, 3"); e("s_add_u32 s36, s36, s38"); e("s_lshr_b32 s37, s2, 5")
    e("s_waitcnt lgkmcnt(0)")
    srd(e, 16, 4, 4096*576*2); srd(e, 20, 6, 32*64*576*2); srd(e, 32, 12, 32*32*16384)
    e("s_cmp_ge_u32 s3, 4"); e("s_cbranch_scc1 B_loader")
    ACC, BF, F, AD0, AD4, ADB = 0, 20, 52, 76, 77, 78
    e("v_lshrrev_b32 v3, 4, v2")
    e("v_bfe_u32 v4, v2, 2, 2")
    e("v_and_b32 v5, 3, v2")
    e("v_lshlrev_b32 v6, 2, v3"); e("v_add_u32 v6, v6, v4")
    e("v_and_b32 v7, 7, v6"); e("v_lshlrev_b32 v7, 1, v7"); e("v_lshrrev_b32 v8, 3, v6"); e("v_add_u32 v7, v7, v8")
    e("v_mul_u32_u24 v7, 144, v7")
    e("v_and_b32 v8, 1, v5"); e("v_lshlrev_b32 v8, 3, v8"); e("v_add_u32 v90, v7, v8")
    e("v_lshrrev_b32 v8, 1, v5"); e("v_lshlrev_b32 v8, 4, v8"); e("v_add_u32 v91, v90, v8")
    e("v_lshlrev_b32 v92, 4, v2"); e("s_lshl_b32 s38, s3, 12"); e("v_add_u32 v92, s38, v92"); e(f"v_add_u32 v92, {WOB}, v92")
    e("v_and_b32 v93, 15, v2"); e("s_lshl_b32 s38, s36, 6"); e("s_lshl_b32 s39, s3, 4"); e("s_add_u32 s38, s38, s39")
    e("v_add_u32 v93, s38, v93"); e("v_mul_u32_u24 v93, 1152, v93"); e("v_lshlrev_b32 v61, 3, v3"); e("v_add_u32 v93, v93, v61")
    e("s_mul_i32 s39, s37, 144")
    e("s_mov_b32 s46, 0")
    st = Stream(e, F, 6, 4)
    def next_slot():
        e("s_barrier")
        e(f"v_add_u32 v{AD0}, s46, v91"); e(f"v_add_u32 v{AD4}, s46, v90"); e(f"v_add_u32 v{ADB}, s46, v92")
        e(f"s_add_u32 s46, s46, {SLOT}"); e(f"s_cmp_eq_u32 s46, {NS*SLOT}"); e("s_cselect_b32 s46, 0, s46")
    def head_jobs(par, first):
        jobs = []
        for t in range(4):
            for nt_ in range(5):
                ad = AD0 if nt_ < 4 else AD4
                o0 = (2*t) * 2304 + 32 * nt_
                o1 = (2*t+1) * 2304 + 32 * nt_
                j = dict(reads=[(0, 2, f"ds_read_b64_tr_b16 {{d}}, v{ad} offset:{o0}"), (2, 2, f"ds_read_b64_tr_b16 {{d}}, v{ad} offset:{o1}")])
                bf = BF + 16 * par + 4 * t
                if nt_ == 0: j["xreads"] = [f"ds_read_b128 {vr(bf,4)}, v{ADB} offset:{t*1024}"]
                if t == 0 and nt_ == 0: j["pre"] = next_slot
                acc = vr(ACC + 4 * nt_, 4)
                c = "0" if (first and t == 0) else acc
                j["mfma"] = (lambda fb, acc=acc, c=c, bf=bf: [f"v_mfma_f32_16x16x32_bf16 {acc}, {vr(fb,4)}, {vr(bf,4)}, {c}"])
                jobs.append(j)
        return jobs
    jobs = []
    for h in range(32): jobs += head_jobs(h % 2, h == 0)
    st.run(jobs)
    e.nop(8)
    for nt_ in range(5):
        a = ACC + 4 * nt_
        e(f"v_cvt_pk_bf16_f32 v{62+2*nt_}, v{a}, v{a+1}"); e(f"v_cvt_pk_bf16_f32 v{63+2*nt_}, v{a+2}, v{a+3}")
    for nt_ in range(5):
        if nt_ == 4:
            e("s_mov_b32 exec_lo, -1"); e("s_mov_b32 exec_hi, 0")
        e(f"buffer_store_dwordx2 v[{62+2*nt_}:{63+2*nt_}], v93, s[20:23], s39 offen offset:{nt_*32}")
    e("s_endpgm")
    e.label("B_loader")
    e("s_sub_u32 s3, s3, 4")
    VWO = 8
    e("s_lshl_b32 s38, s3, 6"); e("v_add_u32 v3, s38, v2")
    for mm in range(5):
        e(f"v_add_u32 v4, {256*mm}, v3")
        e("v_mul_u32_u24 v5, 7282, v4"); e("v_lshrrev_b32 v5, 16, v5")
        e("v_mul_u32_u24 v6, 9, v5"); e("v_sub_u32 v6, v4, v6")
        e("v_and_b32 v7, 15, v5"); e("v_lshrrev_b32 v7, 1, v7"); e("v_and_b32 v20, 1, v5"); e("v_lshlrev_b32 v20, 3, v20"); e("v_add_u32 v7, v7, v20")
        e("v_and_b32 v20, 0xfffffff0, v5"); e("v_add_u32 v7, v7, v20")
        e("v_mul_u32_u24 v7, 1152, v7"); e("v_lshlrev_b32 v6, 4, v6"); e(f"v_add_u32 v{VWO+mm}, v7, v6")
    e("v_lshlrev_b32 v14, 4, v2"); e("s_lshl_b32 s38, s3, 12"); e("v_add_u32 v14, s38, v14")
    e("s_lshl_b32 s48, s3, 10")
    e("s_lshl_b32 s49, s3, 12"); e(f"s_add_u32 s49, s49, {WOB}")
    e("s_mul_i32 s50, s37, 144")
    e("s_lshl_b32 s51, s36, 19")
    e("s_cmp_ge_u32 s3, 2"); e("s_cbranch_scc1 B_loader2")
    for variant in (0, 1):
        nwo = 5 if variant == 0 else 4
        per = nwo + 4
        if variant == 1: e.label("B_loader2")
        def issue(n):
            ring = (n % NS) * SLOT
            e(f"s_add_u32 s53, s50, {n*128*1152}")
            for mm in range(nwo):
                e(f"s_add_u32 m0, s48, {ring + mm*4096}"); e("s_nop 0")
                e(f"buffer_load_dwordx4 v{VWO+mm}, s[16:19], s53 offen lds")
            e(f"s_add_u32 m0, s49, {ring}"); e(f"s_add_u32 s54, s51, {n*16384}")
            for q in range(4): e(f"buffer_load_dwordx4 v14, s[32:35], s54 offen offset:{q*1024} lds")
        for n in range(NS - 2): issue(n)
        issued = NS - 2
        for m in range(32):
            out = issued - (m + 1)
            e(f"s_waitcnt vmcnt({per*out})"); e("s_barrier")
            if issued < 32: issue(issued); issued += 1
        e("s_endpgm")
    e.label("B_end")
    e("s_endpgm")
    kdesc(e, NAME, 96, 64, 96)

def generate(NS=10, nt=True, mappingB=0):
    e = Asm()
    for ln in HDR.rstrip().split("\n"): e(ln)
    e(f"; @launch kernel={KNAME} grid=(256,1,1) block=(512,1,1) lds={NS*16384}")
    e(f"; @launch kernel=oproj_kernel grid=(256,1,1) block=(512,1,1) lds={4*(18432+16384)}")
    e('.amdgcn_target "amdgcn-amd-amdhsa--gfx950"')
    e(".text")
    gen_attn(e, NS=NS, nt=nt)
    gen_oproj(e, mapping=mappingB)
    return e.text()

if __name__ == "__main__":
    for idx in range(1152 + 128):
        assert (idx * 7282) >> 16 == idx // 9, idx
    t = generate()
    p = check_hazards(t)
    for x in p[:40]: print(x)
    print("hazards:", len(p), "lines:", t.count("\n"), "bytes:", len(t))
    open(sys.argv[1] if len(sys.argv) > 1 else "standalone__mha_block_cached__near_ridge.s", "w").write(t)
```

```python
import sys, importlib
from asmlib import check_hazards
mod = importlib.import_module(sys.argv[1])
kw = eval(sys.argv[2]) if len(sys.argv) > 2 else {}
t = mod.generate(**kw)
h = check_hazards(t); assert not h, h[:5]
doc = """; Fused MHA block (Q projection -> attention over the KV cache -> output projection), one persistent launch.
"""
lines = t.split("\n")
k = next(i for i, l in enumerate(lines) if l.startswith("; @launch"))
t2 = "\n".join(lines[:k]) + "\n" + doc + "\n".join(lines[k:])
open('standalone__mha_block_cached__near_ridge.s', 'w').write(t2)
open('final.s', 'w').write(t2)
print("written", len(t2))
```
